```python
import torch

def _softmax(x, axis=-1):
    return torch.softmax(x, dim=axis)
def _gelu(x):
    return torch.nn.functional.gelu(x, approximate="tanh")
def _silu(x):
    return torch.nn.functional.silu(x)
def _sigmoid(x):
    return torch.sigmoid(x)
def _layernorm(x, axis=-1, eps=1e-5):
    m = x.mean(dim=axis, keepdim=True)
    v = x.var(dim=axis, keepdim=True, unbiased=False)
    return (x - m) / torch.sqrt(v + eps)
def _scatter_add(tgt, idx, src, axis=0):
    return tgt.clone().index_add_(axis, idx, src)
def _segment_sum(src, seg, n):
    out = torch.zeros((n,) + src.shape[1:], dtype=src.dtype)
    return out.index_add_(0, seg, src)
def _pad(x, pw):
    flat = tuple(v for pair in reversed(pw) for v in pair)
    return torch.nn.functional.pad(x, flat)

kernel_name = 'interleave_layers__linear_attn_block__moe_arch_mod__prompt'

def setup_inputs():

    _w = (lambda a: (lambda t: t.to(torch.bfloat16) if t.is_floating_point() else t)(torch.as_tensor(a)))
    def _A_setup():
        B, S, D = 1, 2048, 1024
        return {
            "x": _w((lambda *s: torch.randn(*s, dtype=torch.bfloat16) * 0.05)(B, S, D)),
            "wqkv": _w((lambda *s: torch.randn(*s, dtype=torch.bfloat16) * 0.05)(D, 3 * D)),
            "wo": _w((lambda *s: torch.randn(*s, dtype=torch.bfloat16) * 0.05)(D, D)),
        }
    _A_in = _A_setup()

    def _B_setup():
        B, S, D, F, C = 1, 2048, 1024, 3584, 8
        return {
            "x": _w((lambda *s: torch.randn(*s, dtype=torch.bfloat16) * 0.05)(B, S, D)),
            "w_r": _w((lambda *s: torch.randn(*s, dtype=torch.bfloat16) * 0.05)(D)),
            "w_gate": _w((lambda *s: torch.randn(*s, dtype=torch.bfloat16) * 0.05)(D, F)),
            "w_up": _w((lambda *s: torch.randn(*s, dtype=torch.bfloat16) * 0.05)(D, F)),
            "w_down": _w((lambda *s: torch.randn(*s, dtype=torch.bfloat16) * 0.05)(F, D)),
        }
    _B_in = _B_setup()

    return {
        "A_x": _A_in["x"],
        "A_wqkv": _A_in["wqkv"],
        "A_wo": _A_in["wo"],
        "B_x": _B_in["x"],
        "B_w_r": _B_in["w_r"],
        "B_w_gate": _B_in["w_gate"],
        "B_w_up": _B_in["w_up"],
        "B_w_down": _B_in["w_down"],
    }

def reference(A_x, A_wqkv, A_wo, B_x, B_w_r, B_w_gate, B_w_up, B_w_down):
    def _A_ref(x, wqkv, wo):
        B, S, D = x.shape
        H = 32; Dh = D // H
        qkv = (lambda x, *d: x.permute(*d))((x @ wqkv).reshape(B, S, 3, H, Dh), 2, 0, 3, 1, 4)
        q, k, v = qkv[0], qkv[1], qkv[2]
        phi = lambda t: torch.where(t > 0, t + 1, torch.exp(t)) + 1e-6
        pq, pk = phi(q), phi(k)
        kv = torch.einsum("bhsd,bhse->bhde", pk, v)
        z = torch.einsum("bhsd->bhd", pk)
        num = torch.einsum("bhqd,bhde->bhqe", pq, kv)
        den = torch.einsum("bhqd,bhd->bhq", pq, z)[..., None] + 1e-6
        o = num / den
        return (lambda x, *d: x.permute(*d))(o, 0, 2, 1, 3).reshape(B, S, D) @ wo

    def _B_ref(x, w_r, w_gate, w_up, w_down):
        B, S, D = x.shape
        C = 8
        r = x @ w_r
        idx = torch.argsort(-r, axis=-1)[:, :C]
        idx_e = (lambda x, n, axis: torch.repeat_interleave(x, n, dim=axis))(idx.reshape(B, C, 1), D, axis=2)
        x_sel = (lambda x, i, axis: torch.take_along_dim(x, i, dim=axis))(x, idx_e, axis=1)
        g = _silu(x_sel @ w_gate)
        u = x_sel @ w_up
        y = (g * u) @ w_down
        r_sel = _sigmoid((lambda x, i, axis: torch.take_along_dim(x, i, dim=axis))(r, idx, axis=1))
        y = y * r_sel.reshape(B, C, 1)
        b_off = (torch.arange(B) * S).reshape(B, 1)
        flat_idx = (idx + b_off).reshape(B * C)
        zero = (x * 0.0).reshape(B * S, D)
        upd = _scatter_add(zero, flat_idx, y.reshape(B * C, D), axis=0)
        return x + upd.reshape(B, S, D)

    x = A_x
    x = x + _A_ref(_layernorm(x, axis=-1), A_wqkv, A_wo)
    x = x + _B_ref(_layernorm(x, axis=-1), B_w_r, B_w_gate, B_w_up, B_w_down)
    x = x + _A_ref(_layernorm(x, axis=-1), A_wqkv, A_wo)
    x = x + _B_ref(_layernorm(x, axis=-1), B_w_r, B_w_gate, B_w_up, B_w_down)
    return x
```

```python
import json, sys

S, D, H, DH, F, C = 2048, 1024, 32, 32, 3584, 8
MB = 1 << 20
L = dict(
    XN=0 * MB, PQ=4 * MB, O=8 * MB, X1=12 * MB, X2=16 * MB,
    KVP=20 * MB,
    STATS=23 * MB,
    WSUM=23 * MB + 64 * 1024,
    SEL=23 * MB + 65 * 1024,
    GUP=24 * MB,
    YP=26 * MB,
)
WS_BYTES = 268435456
KA = dict(A_x=0, wqkv=8, wo=16, B_x=24, w_r=32, w_gate=40, w_up=48, w_down=56, out=64, dbg=72, ws=80)


class Asm:
    def __init__(self):
        self.lines = []

    def __call__(self, s):
        for ln in s.split("\n"):
            ln = ln.strip()
            if ln:
                self.lines.append("    " + ln)

    def label(self, l):
        self.lines.append(l + ":")

    def raw(self, s):
        self.lines.append(s)

    def text(self):
        return "\n".join(self.lines) + "\n"


def srd(a, sreg, base_lo, base_hi, off, size):
    if off:
        a(f"s_add_u32 s{sreg}, s{base_lo}, {off}")
        a(f"s_addc_u32 s{sreg+1}, s{base_hi}, 0")
    else:
        a(f"s_mov_b32 s{sreg}, s{base_lo}")
        a(f"s_mov_b32 s{sreg+1}, s{base_hi}")
    a(f"s_mov_b32 s{sreg+2}, {size}")
    a(f"s_mov_b32 s{sreg+3}, 0x00020000")


def kernel_header(a, name):
    a.raw(".text")
    a.raw(f".globl {name}")
    a.raw(".p2align 8")
    a.raw(f".type {name},@function")
    a.label(name)


def kernel_desc(name, vgpr, sgpr=100, accum=None):
    accum = accum if accum is not None else ((vgpr + 3) // 4) * 4
    return f""".section .rodata,"a"
.p2align 6
.amdhsa_kernel {name}
  .amdhsa_next_free_vgpr {vgpr}
  .amdhsa_next_free_sgpr {sgpr}
  .amdhsa_accum_offset {accum}
  .amdhsa_group_segment_fixed_size 0
  .amdhsa_kernarg_size 88
  .amdhsa_user_sgpr_count 2
  .amdhsa_user_sgpr_kernarg_segment_ptr 1
  .amdhsa_system_sgpr_workgroup_id_x 1
.end_amdhsa_kernel
"""


def wave_allreduce_add(a, v, tmp, stmp):
    a(f"s_nop 1")
    a(f"v_add_f32_dpp v{v}, v{v}, v{v} quad_perm:[1,0,3,2] row_mask:0xf bank_mask:0xf")
    a(f"s_nop 1")
    a(f"v_add_f32_dpp v{v}, v{v}, v{v} quad_perm:[2,3,0,1] row_mask:0xf bank_mask:0xf")
    a(f"s_nop 1")
    a(f"v_add_f32_dpp v{v}, v{v}, v{v} row_half_mirror row_mask:0xf bank_mask:0xf")
    a(f"s_nop 1")
    a(f"v_add_f32_dpp v{v}, v{v}, v{v} row_mirror row_mask:0xf bank_mask:0xf")
    a(f"s_nop 1")
    a(f"v_readlane_b32 s{stmp}, v{v}, 0")
    a(f"v_readlane_b32 s{stmp+1}, v{v}, 16")
    a(f"v_readlane_b32 s{stmp+2}, v{v}, 32")
    a(f"v_readlane_b32 s{stmp+3}, v{v}, 48")
    a(f"s_nop 1")
    a(f"v_mov_b32 v{v}, s{stmp}")
    a(f"v_add_f32 v{v}, s{stmp+1}, v{v}")
    a(f"v_add_f32 v{v}, s{stmp+2}, v{v}")
    a(f"v_add_f32 v{v}, s{stmp+3}, v{v}")


def bf16r(a, v, tmp):
    a(f"v_cvt_pk_bf16_f32 v{tmp}, v{v}, v{v}")
    a(f"v_lshlrev_b32 v{v}, 16, v{tmp}")


def bf16r2(a, v0, v1, tmp):
    a(f"v_cvt_pk_bf16_f32 v{tmp}, v{v0}, v{v1}")
    a(f"v_lshlrev_b32 v{v0}, 16, v{tmp}")
    a(f"v_and_b32 v{v1}, 0xffff0000, v{tmp}")


def unpack2(a, src, lo, hi):
    a(f"v_lshlrev_b32 v{lo}, 16, v{src}")
    a(f"v_and_b32 v{hi}, 0xffff0000, v{src}")


def ln_rows(a, X, T, stmp, out_srd, voff, srow):
    t0, t1, t2, t3 = T, T + 1, T + 2, T + 3
    a(f"v_add_f32 v{t0}, v{X[0]}, v{X[1]}")
    for i in range(2, 16):
        a(f"v_add_f32 v{t0}, v{t0}, v{X[i]}")
    wave_allreduce_add(a, t0, t1, stmp)
    a(f"v_mul_f32 v{t0}, 0x3a800000, v{t0}")
    a(f"v_sub_f32 v{t2}, v{X[0]}, v{t0}")
    a(f"v_mul_f32 v{t1}, v{t2}, v{t2}")
    for i in range(1, 16):
        a(f"v_sub_f32 v{t2}, v{X[i]}, v{t0}")
        a(f"v_fmac_f32 v{t1}, v{t2}, v{t2}")
    wave_allreduce_add(a, t1, t2, stmp)
    a(f"v_mul_f32 v{t1}, 0x3a800000, v{t1}")
    bf16r(a, t0, t2)
    bf16r(a, t1, t2)
    a(f"v_add_f32 v{t1}, 0x3727c5ac, v{t1}")
    bf16r(a, t1, t2)
    a(f"v_sqrt_f32 v{t1}, v{t1}")
    a(f"s_nop 0")
    bf16r(a, t1, t2)
    a(f"v_rcp_f32 v{t1}, v{t1}")
    a(f"s_nop 0")
    for i in range(0, 16, 2):
        a(f"v_sub_f32 v{X[i]}, v{X[i]}, v{t0}")
        a(f"v_sub_f32 v{X[i+1]}, v{X[i+1]}, v{t0}")
        bf16r2(a, X[i], X[i + 1], t2)
        a(f"v_mul_f32 v{X[i]}, v{X[i]}, v{t1}")
        a(f"v_mul_f32 v{X[i+1]}, v{X[i+1]}, v{t1}")
        a(f"v_cvt_pk_bf16_f32 v{X[i]}, v{X[i]}, v{X[i+1]}")
    P = T + 4
    for j in range(8):
        a(f"v_mov_b32 v{P+j}, v{X[2*j]}")
    a(f"buffer_store_dwordx4 v[{P}:{P+3}], v{voff}, s[{out_srd}:{out_srd+3}], s{srow} offen")
    a(f"buffer_store_dwordx4 v[{P+4}:{P+7}], v{voff}, s[{out_srd}:{out_srd+3}], s{srow} offen offset:1024")


def gen_rowk(name, mode):
    a = Asm()
    kernel_header(a, name)
    a("s_cmp_ge_u32 s2, 512")
    a("s_cbranch_scc1 L_end_" + name)
    a("s_load_dwordx2 s[4:5], s[0:1], 80")
    if mode == 'ln0':
        a("s_load_dwordx2 s[6:7], s[0:1], 0")
    elif mode == 'comb2':
        a("s_load_dwordx2 s[6:7], s[0:1], 64")
    a("v_lshrrev_b32 v1, 6, v0")
    a("v_and_b32 v2, 63, v0")
    a("s_nop 0")
    a("v_readfirstlane_b32 s3, v1")
    a("s_lshl_b32 s20, s2, 2")
    a("s_add_u32 s20, s20, s3")
    a("s_lshl_b32 s21, s20, 11")
    a("v_lshlrev_b32 v3, 4, v2")
    a("s_waitcnt lgkmcnt(0)")
    if mode == 'ln0':
        srd(a, 8, 6, 7, 0, S * D * 2)
    else:
        srd(a, 8, 4, 5, L['X1'], S * D * 2)
    srd(a, 12, 4, 5, L['XN'], S * D * 2)
    srd(a, 16, 4, 5, 0, 28 * MB)
    a("buffer_load_dwordx4 v[4:7], v3, s[8:11], s21 offen")
    a("buffer_load_dwordx4 v[8:11], v3, s[8:11], s21 offen offset:1024")
    X = list(range(16, 32))
    if mode != 'ln0':
        a(f"s_lshl_b32 s22, s20, 2")
        a(f"v_mov_b32 v12, 0")
        a(f"buffer_load_dword v13, v12, s[16:19], s22 offen offset:0")
        a.lines.pop()
        a(f"s_add_u32 s23, s22, {L['STATS']}")
        a(f"buffer_load_dword v13, v12, s[16:19], s23 offen")
        a(f"s_add_u32 s23, s22, {L['STATS'] + 8192}")
        a(f"buffer_load_dword v14, v12, s[16:19], s23 offen")
        a(f"s_add_u32 s24, s4, {L['SEL']}")
        a(f"s_addc_u32 s25, s5, 0")
        a("s_load_dwordx8 s[32:39], s[24:25], 0")
        a("s_load_dwordx8 s[40:47], s[24:25], 32")
    a("s_waitcnt vmcnt(0)")
    for j in range(8):
        unpack2(a, 4 + j, X[2 * j], X[2 * j + 1])
    if mode == 'ln0':
        ln_rows(a, X, 32, 60, 12, 3, 21)
        a("s_endpgm")
        a.label("L_end_" + name)
        a("s_endpgm")
        return a.text(), kernel_desc(name, 48)
    a("v_mul_f32 v13, 0x3a800000, v13")
    a("v_mul_f32 v14, 0x3a800000, v14")
    a("v_fma_f32 v14, -v13, v13, v14")
    a("v_max_f32 v14, 0, v14")
    bf16r(a, 13, 15)
    bf16r(a, 14, 15)
    a("v_add_f32 v14, 0x3727c5ac, v14")
    bf16r(a, 14, 15)
    a("v_sqrt_f32 v14, v14")
    a("s_nop 0")
    bf16r(a, 14, 15)
    a("v_rcp_f32 v14, v14")
    a("s_nop 0")
    Y = list(range(32, 48))
    for i in range(0, 16, 2):
        a(f"v_sub_f32 v{Y[i]}, v{X[i]}, v13")
        a(f"v_sub_f32 v{Y[i+1]}, v{X[i+1]}, v13")
        bf16r2(a, Y[i], Y[i + 1], 15)
        a(f"v_mul_f32 v{Y[i]}, v{Y[i]}, v14")
        a(f"v_mul_f32 v{Y[i+1]}, v{Y[i+1]}, v14")
        bf16r2(a, Y[i], Y[i + 1], 15)
    a("s_waitcnt lgkmcnt(0)")
    a("s_mov_b32 s26, -1")
    for j in range(8):
        a(f"s_cmp_eq_u32 s20, s{32+j}")
        a(f"s_cselect_b32 s26, {j}, s26")
    a("s_cmp_eq_u32 s26, -1")
    a("s_cbranch_scc1 L_nosel_" + name)
    a("s_mov_b32 s27, s40")
    for j in range(1, 8):
        a(f"s_cmp_eq_u32 s26, {j}")
        a(f"s_cselect_b32 s27, s{40+j}, s27")
    a("v_lshlrev_b32 v64, 5, v2")
    a("s_lshl_b32 s28, s26, 12")
    a(f"s_add_u32 s28, s28, {L['YP']}")
    for i in range(16):
        a(f"v_mov_b32 v{48+i}, 0")
    for ks in range(14):
        a(f"buffer_load_dwordx4 v[68:71], v64, s[16:19], s28 offen")
        a(f"buffer_load_dwordx4 v[72:75], v64, s[16:19], s28 offen offset:16")
        a(f"buffer_load_dwordx4 v[76:79], v64, s[16:19], s28 offen offset:2048")
        a(f"buffer_load_dwordx4 v[80:83], v64, s[16:19], s28 offen offset:2064")
        a("s_add_u32 s28, s28, 32768")
        a("s_waitcnt vmcnt(0)")
        for i in range(16):
            a(f"v_add_f32 v{48+i}, v{48+i}, v{68+i}")
    for i in range(0, 16, 2):
        bf16r2(a, 48 + i, 49 + i, 15)
        a(f"v_mul_f32 v{48+i}, s27, v{48+i}")
        a(f"v_mul_f32 v{49+i}, s27, v{49+i}")
        bf16r2(a, 48 + i, 49 + i, 15)
        a(f"v_add_f32 v{Y[i]}, v{Y[i]}, v{48+i}")
        a(f"v_add_f32 v{Y[i+1]}, v{Y[i+1]}, v{49+i}")
        bf16r2(a, Y[i], Y[i + 1], 15)
    a.label("L_nosel_" + name)
    for i in range(0, 16, 2):
        a(f"v_add_f32 v{X[i]}, v{X[i]}, v{Y[i]}")
        a(f"v_add_f32 v{X[i+1]}, v{X[i+1]}, v{Y[i+1]}")
        bf16r2(a, X[i], X[i + 1], 15)
    for j in range(8):
        a(f"v_cvt_pk_bf16_f32 v{48+j}, v{X[2*j]}, v{X[2*j+1]}")
    if mode == 'comb1':
        srd(a, 8, 4, 5, L['X2'], S * D * 2)
    else:
        srd(a, 8, 6, 7, 0, S * D * 2)
    a("buffer_store_dwordx4 v[48:51], v3, s[8:11], s21 offen")
    a("buffer_store_dwordx4 v[52:55], v3, s[8:11], s21 offen offset:1024")
    if mode == 'comb1':
        ln_rows(a, X, 32, 60, 12, 3, 21)
    a("s_endpgm")
    a.label("L_end_" + name)
    a("s_endpgm")
    return a.text(), kernel_desc(name, 88)


if __name__ == "__main__":
    pass
```

```python
from gen import *

LOG2E = 0x3fb8aa3b


def wave_allreduce_max_u32(a, v, stmp):
    a("s_nop 1")
    a(f"v_max_u32_dpp v{v}, v{v}, v{v} quad_perm:[1,0,3,2] row_mask:0xf bank_mask:0xf")
    a("s_nop 1")
    a(f"v_max_u32_dpp v{v}, v{v}, v{v} quad_perm:[2,3,0,1] row_mask:0xf bank_mask:0xf")
    a("s_nop 1")
    a(f"v_max_u32_dpp v{v}, v{v}, v{v} row_half_mirror row_mask:0xf bank_mask:0xf")
    a("s_nop 1")
    a(f"v_max_u32_dpp v{v}, v{v}, v{v} row_mirror row_mask:0xf bank_mask:0xf")
    a("s_nop 1")
    a(f"v_readlane_b32 s{stmp}, v{v}, 0")
    a(f"v_readlane_b32 s{stmp+1}, v{v}, 16")
    a(f"v_readlane_b32 s{stmp+2}, v{v}, 32")
    a(f"v_readlane_b32 s{stmp+3}, v{v}, 48")
    a("s_nop 3")
    a(f"s_max_u32 s{stmp}, s{stmp}, s{stmp+1}")
    a(f"s_max_u32 s{stmp+2}, s{stmp+2}, s{stmp+3}")
    a(f"s_max_u32 s{stmp}, s{stmp}, s{stmp+2}")


def stats_to_msd(a, vS1, vS2, vt):
    a(f"v_mul_f32 v{vS1}, 0x3a800000, v{vS1}")
    a(f"v_mul_f32 v{vS2}, 0x3a800000, v{vS2}")
    a(f"v_fma_f32 v{vS2}, -v{vS1}, v{vS1}, v{vS2}")
    a(f"v_max_f32 v{vS2}, 0, v{vS2}")
    bf16r(a, vS1, vt)
    bf16r(a, vS2, vt)
    a(f"v_add_f32 v{vS2}, 0x3727c5ac, v{vS2}")
    bf16r(a, vS2, vt)
    a(f"v_sqrt_f32 v{vS2}, v{vS2}")
    a("s_nop 0")
    bf16r(a, vS2, vt)


def gen_k3(name):
    NS, KS = 28, 8
    XS = 65536
    SCR = XS + 8192
    a = Asm()
    kernel_header(a, name)
    a(f"s_cmp_ge_u32 s2, {NS*KS}")
    a("s_cbranch_scc1 L_end_" + name)
    a("s_load_dwordx2 s[4:5], s[0:1], 80")
    a("s_load_dwordx2 s[6:7], s[0:1], 40")
    a("s_load_dwordx2 s[28:29], s[0:1], 48")
    a("v_lshrrev_b32 v1, 6, v0")
    a("v_and_b32 v2, 63, v0")
    a("s_nop 0")
    a("v_readfirstlane_b32 s3, v1")
    a("s_mul_hi_u32 s20, s2, 0x924924a")
    a("s_mul_i32 s21, s20, 28")
    a("s_sub_u32 s21, s2, s21")
    a("s_waitcnt lgkmcnt(0)")
    srd(a, 16, 4, 5, 0, 28 * MB)
    srd(a, 8, 6, 7, 0, D * F * 2)
    srd(a, 12, 28, 29, 0, D * F * 2)
    a("v_lshlrev_b32 v4, 2, v0")
    for k in range(3):
        for i in range(8):
            a(f"s_mov_b32 s22, {L['STATS'] + k*8192 + i*1024}")
            a(f"buffer_load_dword v{32+k*8+i}, v4, s[16:19], s22 offen")
    a("v_mov_b32 v5, 0")
    a(f"s_mov_b32 s22, {L['WSUM']}")
    a("buffer_load_dword v56, v5, s[16:19], s22 offen")
    a("v_lshrrev_b32 v6, 4, v2")
    a("v_lshlrev_b32 v7, 2, v6")
    a("v_and_b32 v8, 15, v2")
    a("v_xor_b32 v7, v7, v8")
    a("v_lshlrev_b32 v7, 4, v7")
    a("s_mov_b32 s22, 7168")
    a("v_mul_lo_u32 v6, v6, s22")
    a("v_add_u32 v6, v6, v7")
    a("s_mul_i32 s22, s20, 917504")
    a("s_lshl_b32 s23, s21, 8")
    a("s_add_u32 s22, s22, s23")
    a("s_mul_i32 s23, s3, 229376")
    a("s_add_u32 s22, s22, s23")
    a("s_lshl_b32 s23, s3, 13")
    for m in range(2):
        for t in range(8):
            a(f"s_add_u32 s24, s23, {m*32768 + t*1024}")
            a("s_mov_b32 m0, s24")
            a(f"s_add_u32 s25, s22, {t*4*7168}")
            a(f"buffer_load_dwordx4 v6, s[{8+4*m}:{11+4*m}], s25 offen lds")
    a("s_waitcnt vmcnt(16)")
    for i in range(8):
        S1, S2, S3 = 32 + i, 40 + i, 48 + i
        stats_to_msd(a, S1, S2, 60)
        a(f"v_rcp_f32 v{S2}, v{S2}")
        a(f"v_fma_f32 v{S3}, -v{S1}, v56, v{S3}")
        a(f"v_mul_f32 v{S3}, v{S3}, v{S2}")
        bf16r(a, S3, 60)
        a(f"v_not_b32 v60, v{S3}")
        a(f"v_or_b32 v61, 0x80000000, v{S3}")
        a(f"v_cmp_gt_i32 vcc, 0, v{S3}")
        a("s_nop 1")
        a(f"v_cndmask_b32 v60, v61, v60, vcc")
        a(f"v_and_b32 v60, 0xffff0000, v60")
        a(f"v_sub_u32 v61, {0xffff - 256*i}, v0")
        a(f"v_or_b32 v{32+i}, v60, v61")
    for rnd in range(8):
        a("v_max_u32 v60, v32, v33")
        for i in range(2, 8):
            a(f"v_max_u32 v60, v60, v{32+i}")
        wave_allreduce_max_u32(a, 60, 70)
        a(f"s_mov_b32 s{60+rnd}, s70")
        for i in range(8):
            a(f"v_cmp_eq_u32 vcc, s70, v{32+i}")
            a("s_nop 1")
            a(f"v_cndmask_b32 v{32+i}, v{32+i}, 0, vcc")
    a("v_mov_b32 v60, 0")
    for k in range(8):
        a(f"v_writelane_b32 v60, s{60+k}, {k}")
    a("v_lshlrev_b32 v61, 2, v2")
    a("s_lshl_b32 s24, s3, 5")
    a("v_add_u32 v61, s24, v61")
    a(f"v_add_u32 v61, {SCR}, v61")
    a("s_mov_b64 exec, 0xff")
    a(f"ds_write_b32 v61, v60")
    a("s_mov_b64 exec, -1")
    a("s_waitcnt lgkmcnt(0)")
    a("s_barrier")
    a("v_lshlrev_b32 v61, 2, v2")
    a("v_and_b32 v61, 127, v61")
    a(f"v_add_u32 v61, {SCR}, v61")
    a(f"ds_read_b32 v62, v61")
    a("s_waitcnt lgkmcnt(0)")
    a("v_cmp_gt_u32 vcc, 32, v2")
    a("s_nop 1")
    a("v_cndmask_b32 v62, 0, v62, vcc")
    for rnd in range(8):
        a("v_mov_b32 v60, v62")
        wave_allreduce_max_u32(a, 60, 70)
        a(f"s_mov_b32 s{60+rnd}, s70")
        a("v_cmp_eq_u32 vcc, s70, v62")
        a("s_nop 1")
        a("v_cndmask_b32 v62, v62, 0, vcc")
    for k in range(8):
        a(f"s_and_b32 s{72+k}, s{60+k}, 0xffff")
        a(f"s_sub_u32 s{72+k}, 0xffff, s{72+k}")
    a("s_cmp_lg_u32 s2, 0")
    a("s_cbranch_scc1 L_nosel_" + name)
    a("s_cmp_lg_u32 s3, 0")
    a("s_cbranch_scc1 L_nosel_" + name)
    a("v_mov_b32 v60, 0")
    a("v_mov_b32 v61, 0")
    for k in range(8):
        a(f"v_writelane_b32 v60, s{72+k}, {k}")
        a(f"v_writelane_b32 v61, s{60+k}, {k}")
    a("v_and_b32 v61, 0xffff0000, v61")
    a("v_xor_b32 v62, 0x80000000, v61")
    a("v_not_b32 v63, v61")
    a("v_and_b32 v63, 0xffff0000, v63")
    a("v_cmp_gt_i32 vcc, 0, v61")
    a("s_nop 1")
    a("v_cndmask_b32 v61, v63, v62, vcc")
    a(f"v_mul_f32 v61, 0xbfb8aa3b, v61")
    a("v_exp_f32 v61, v61")
    a("s_nop 0")
    a("v_add_f32 v61, 1.0, v61")
    a("v_rcp_f32 v61, v61")
    a("s_nop 0")
    bf16r(a, 61, 62)
    a("v_lshlrev_b32 v62, 2, v2")
    a("s_mov_b64 exec, 0xff")
    a(f"s_mov_b32 s24, {L['SEL']}")
    a("buffer_store_dword v60, v62, s[16:19], s24 offen")
    a("buffer_store_dword v61, v62, s[16:19], s24 offen offset:32")
    a("s_mov_b64 exec, -1")
    a.label("L_nosel_" + name)
    a("s_mov_b32 s24, s72")
    a("s_mov_b32 s25, s73")
    for w in range(1, 4):
        a(f"s_cmp_eq_u32 s3, {w}")
        a(f"s_cselect_b32 s24, s{72+2*w}, s24")
        a(f"s_cselect_b32 s25, s{73+2*w}, s25")
    a("v_mov_b32 v60, s24")
    a("v_mov_b32 v61, s25")
    a("v_cmp_gt_u32 vcc, 32, v2")
    a("s_nop 1")
    a("v_cndmask_b32 v60, v61, v60, vcc")
    a("v_lshlrev_b32 v61, 2, v60")
    a(f"s_mov_b32 s24, {L['STATS']}")
    a("buffer_load_dword v32, v61, s[16:19], s24 offen")
    a(f"s_mov_b32 s24, {L['STATS']+8192}")
    a("buffer_load_dword v33, v61, s[16:19], s24 offen")
    a("v_lshlrev_b32 v61, 11, v60")
    a("v_and_b32 v62, 31, v2")
    a("v_lshlrev_b32 v62, 3, v62")
    a("v_add_u32 v61, v61, v62")
    a("s_lshl_b32 s24, s20, 8")
    a(f"s_add_u32 s24, s24, {L['X1']}")
    a("buffer_load_dwordx2 v[34:35], v61, s[16:19], s24 offen")
    a("s_waitcnt vmcnt(0)")
    stats_to_msd(a, 32, 33, 60)
    a("v_rcp_f32 v33, v33")
    a("s_nop 0")
    unpack2(a, 34, 36, 37)
    unpack2(a, 35, 38, 39)
    for p in (36, 38):
        a(f"v_sub_f32 v{p}, v{p}, v32")
        a(f"v_sub_f32 v{p+1}, v{p+1}, v32")
        bf16r2(a, p, p + 1, 60)
        a(f"v_mul_f32 v{p}, v{p}, v33")
        a(f"v_mul_f32 v{p+1}, v{p+1}, v33")
    a("v_cvt_pk_bf16_f32 v34, v36, v37")
    a("v_cvt_pk_bf16_f32 v35, v38, v39")
    a("v_lshrrev_b32 v60, 5, v2")
    a("s_lshl_b32 s24, s3, 1")
    a("v_add_u32 v60, s24, v60")
    a("v_lshlrev_b32 v60, 8, v60")
    a("v_add_u32 v60, v60, v62")
    a(f"ds_write_b64 v60, v[34:35] offset:{0}")
    a.lines.pop()
    a(f"v_add_u32 v60, {XS}, v60")
    a("ds_write_b64 v60, v[34:35]")
    a("s_waitcnt lgkmcnt(0)")
    a("s_barrier")
    a("v_lshrrev_b32 v60, 5, v2")
    a("v_lshlrev_b32 v60, 3, v60")
    a("v_lshrrev_b32 v61, 2, v2")
    a("v_and_b32 v61, 3, v61")
    a("v_add_u32 v60, v60, v61")
    a("v_lshlrev_b32 v60, 8, v60")
    a("v_lshrrev_b32 v62, 4, v2")
    a("v_and_b32 v62, 1, v62")
    a("v_lshlrev_b32 v62, 1, v62")
    a("v_lshrrev_b32 v63, 1, v2")
    a("v_and_b32 v63, 1, v63")
    a("v_add_u32 v62, v62, v63")
    a("s_lshl_b32 s24, s3, 2")
    a("v_add_u32 v62, s24, v62")
    a("v_lshlrev_b32 v61, 2, v61")
    a("v_xor_b32 v62, v62, v61")
    a("v_lshlrev_b32 v62, 4, v62")
    a("v_add_u32 v60, v60, v62")
    a("v_and_b32 v62, 1, v2")
    a("v_lshlrev_b32 v62, 3, v62")
    a("v_add_u32 v60, v60, v62")
    a("v_and_b32 v61, 31, v2")
    a("v_lshlrev_b32 v61, 8, v61")
    a("v_lshrrev_b32 v62, 5, v2")
    a("v_lshlrev_b32 v62, 4, v62")
    a("v_add_u32 v61, v61, v62")
    a(f"v_add_u32 v61, {XS}, v61")
    a(f"v_add_u32 v63, 32768, v60")
    for i in range(32):
        a(f"v_mov_b32 v{96+i}, 0")
    for j in range(8):
        a(f"ds_read_b128 v[{64+4*j}:{67+4*j}], v61 offset:{j*32}")
    for m in range(2):
        va = 60 if m == 0 else 63
        for j in range(8):
            f = 128 + (m * 8 + j) * 4
            for half in range(2):
                a(f"ds_read_b64_tr_b16 v[{f+2*half}:{f+2*half+1}], v{va} offset:{(16*j+4*half)*256}")
    a("s_waitcnt lgkmcnt(0)")
    a("s_nop 1")
    for m in range(2):
        acc = 96 + 16 * m
        for j in range(8):
            f = 128 + (m * 8 + j) * 4
            a(f"v_mfma_f32_32x32x16_bf16 v[{acc}:{acc+15}], v[{f}:{f+3}], v[{64+4*j}:{67+4*j}], v[{acc}:{acc+15}]")
    a("s_nop 15")
    a("s_nop 3")
    a("v_and_b32 v60, 31, v2")
    a("v_cmp_gt_u32 vcc, 8, v60")
    a("s_nop 1")
    a("s_and_b64 exec, exec, vcc")
    a(f"s_mov_b32 s24, {3584*4}")
    a("v_mul_lo_u32 v60, v60, s24")
    a("v_lshrrev_b32 v61, 5, v2")
    a("v_lshlrev_b32 v61, 4, v61")
    a("v_add_u32 v60, v60, v61")
    for m in range(2):
        a(f"s_lshl_b32 s24, s20, 1")
        a(f"s_add_u32 s24, s24, {m}")
        a(f"s_mul_i32 s24, s24, {8*3584*4}")
        a(f"s_lshl_b32 s25, s21, 9")
        a(f"s_add_u32 s24, s24, s25")
        a(f"s_lshl_b32 s25, s3, 7")
        a(f"s_add_u32 s24, s24, s25")
        a(f"s_add_u32 s24, s24, {L['GUP']}")
        acc = 96 + 16 * m
        for q in range(4):
            a(f"buffer_store_dwordx4 v[{acc+4*q}:{acc+4*q+3}], v60, s[16:19], s24 offen offset:{q*32}")
    a("s_endpgm")
    a.label("L_end_" + name)
    a("s_endpgm")
    return a.text(), kernel_desc(name, 192)


def gen_k4(name):
    NS, KS = 16, 14
    HS = 32768
    a = Asm()
    kernel_header(a, name)
    a(f"s_cmp_ge_u32 s2, {NS*KS}")
    a("s_cbranch_scc1 L_end_" + name)
    a("s_load_dwordx2 s[4:5], s[0:1], 80")
    a("s_load_dwordx2 s[6:7], s[0:1], 56")
    a("v_lshrrev_b32 v1, 6, v0")
    a("v_and_b32 v2, 63, v0")
    a("s_nop 0")
    a("v_readfirstlane_b32 s3, v1")
    a("s_lshr_b32 s20, s2, 4")
    a("s_and_b32 s21, s2, 15")
    a("s_waitcnt lgkmcnt(0)")
    srd(a, 16, 4, 5, 0, 28 * MB)
    srd(a, 8, 6, 7, 0, F * D * 2)
    a("v_lshrrev_b32 v4, 5, v0")
    a(f"s_mov_b32 s22, {3584*4}")
    a("v_mul_lo_u32 v4, v4, s22")
    a("v_and_b32 v5, 31, v0")
    a("v_lshlrev_b32 v5, 5, v5")
    a("v_add_u32 v4, v4, v5")
    a("s_lshl_b32 s22, s20, 10")
    a(f"s_add_u32 s22, s22, {L['GUP']}")
    for k3 in range(8):
        for m in range(2):
            r = 32 + (k3 * 2 + m) * 8
            a(f"s_add_u32 s23, s22, {(k3*2+m)*8*3584*4}")
            a(f"buffer_load_dwordx4 v[{r}:{r+3}], v4, s[16:19], s23 offen")
            a(f"buffer_load_dwordx4 v[{r+4}:{r+7}], v4, s[16:19], s23 offen offset:16")
    a("v_lshrrev_b32 v6, 4, v2")
    a("v_and_b32 v6, 1, v6")
    a("v_lshlrev_b32 v6, 2, v6")
    a("v_and_b32 v7, 7, v2")
    a("v_xor_b32 v6, v6, v7")
    a("v_lshlrev_b32 v6, 4, v6")
    a("v_lshrrev_b32 v7, 3, v2")
    a("v_lshlrev_b32 v7, 11, v7")
    a("v_add_u32 v6, v6, v7")
    a("s_lshl_b32 s22, s20, 19")
    a("s_lshl_b32 s23, s21, 7")
    a("s_add_u32 s22, s22, s23")
    a("s_lshl_b32 s23, s3, 17")
    a("s_add_u32 s22, s22, s23")
    a("s_lshl_b32 s23, s3, 13")
    for t in range(8):
        a(f"s_add_u32 s24, s23, {t*1024}")
        a("s_mov_b32 m0, s24")
        a(f"s_add_u32 s25, s22, {t*8*2048}")
        a("buffer_load_dwordx4 v6, s[8:11], s25 offen lds")
    a("s_waitcnt vmcnt(8)")
    for k3 in range(1, 8):
        for i in range(16):
            a(f"v_add_f32 v{32+i}, v{32+i}, v{32+16*k3+i}")
    for i in range(0, 8, 2):
        g0, g1, u0, u1 = 32 + i, 33 + i, 40 + i, 41 + i
        bf16r2(a, g0, g1, 60)
        bf16r2(a, u0, u1, 60)
        a(f"v_mul_f32 v61, 0xbfb8aa3b, v{g0}")
        a(f"v_mul_f32 v62, 0xbfb8aa3b, v{g1}")
        a("v_exp_f32 v61, v61")
        a("v_exp_f32 v62, v62")
        a("s_nop 0")
        a("v_add_f32 v61, 1.0, v61")
        a("v_add_f32 v62, 1.0, v62")
        a("v_rcp_f32 v61, v61")
        a("v_rcp_f32 v62, v62")
        a("s_nop 0")
        a(f"v_mul_f32 v{g0}, v{g0}, v61")
        a(f"v_mul_f32 v{g1}, v{g1}, v62")
        bf16r2(a, g0, g1, 60)
        a(f"v_mul_f32 v{g0}, v{g0}, v{u0}")
        a(f"v_mul_f32 v{g1}, v{g1}, v{u1}")
        a(f"v_cvt_pk_bf16_f32 v{48+i//2}, v{g0}, v{g1}")
    a("v_lshrrev_b32 v4, 5, v0")
    a("v_lshlrev_b32 v4, 9, v4")
    a("v_and_b32 v5, 31, v0")
    a("v_lshlrev_b32 v5, 4, v5")
    a("v_add_u32 v4, v4, v5")
    a(f"v_add_u32 v4, {HS}, v4")
    a("ds_write_b128 v4, v[48:51]")
    a("s_waitcnt vmcnt(0) lgkmcnt(0)")
    a("s_barrier")
    a("v_lshrrev_b32 v60, 4, v2")
    a("v_lshlrev_b32 v60, 3, v60")
    a("v_lshrrev_b32 v61, 2, v2")
    a("v_and_b32 v61, 3, v61")
    a("v_add_u32 v60, v60, v61")
    a("v_lshlrev_b32 v60, 7, v60")
    a("v_lshrrev_b32 v62, 1, v2")
    a("v_and_b32 v62, 1, v62")
    a("s_lshl_b32 s24, s3, 1")
    a("v_add_u32 v62, s24, v62")
    a("v_lshrrev_b32 v63, 1, v61")
    a("v_and_b32 v63, 1, v63")
    a("v_lshlrev_b32 v63, 2, v63")
    a("v_xor_b32 v62, v62, v63")
    a("v_lshlrev_b32 v62, 4, v62")
    a("v_add_u32 v60, v60, v62")
    a("v_and_b32 v62, 1, v2")
    a("v_lshlrev_b32 v62, 3, v62")
    a("v_add_u32 v60, v60, v62")
    a("v_and_b32 v61, 15, v2")
    a("v_lshlrev_b32 v61, 9, v61")
    a("v_lshrrev_b32 v62, 4, v2")
    a("v_lshlrev_b32 v62, 4, v62")
    a("v_add_u32 v61, v61, v62")
    a(f"v_add_u32 v61, {HS}, v61")
    for i in range(4):
        a(f"v_mov_b32 v{96+i}, 0")
    for j in range(8):
        a(f"ds_read_b128 v[{64+4*j}:{67+4*j}], v61 offset:{j*64}")
        f = 128 + 4 * j
        for half in range(2):
            a(f"ds_read_b64_tr_b16 v[{f+2*half}:{f+2*half+1}], v60 offset:{(32*j+4*half)*128}")
    a("s_waitcnt lgkmcnt(0)")
    a("s_nop 1")
    for j in range(8):
        f = 128 + 4 * j
        a(f"v_mfma_f32_16x16x32_bf16 v[96:99], v[{f}:{f+3}], v[{64+4*j}:{67+4*j}], v[96:99]")
    a("s_nop 15")
    a("v_and_b32 v60, 15, v2")
    a("v_cmp_gt_u32 vcc, 8, v60")
    a("s_nop 1")
    a("s_and_b64 exec, exec, vcc")
    a("v_lshlrev_b32 v60, 12, v60")
    a("v_lshrrev_b32 v61, 4, v2")
    a("v_lshlrev_b32 v61, 4, v61")
    a("v_add_u32 v60, v60, v61")
    a("s_lshl_b32 s24, s20, 15")
    a("s_lshl_b32 s25, s21, 8")
    a("s_add_u32 s24, s24, s25")
    a("s_lshl_b32 s25, s3, 6")
    a("s_add_u32 s24, s24, s25")
    a(f"s_add_u32 s24, s24, {L['YP']}")
    a("buffer_store_dwordx4 v[96:99], v60, s[16:19], s24 offen")
    a("s_endpgm")
    a.label("L_end_" + name)
    a("s_endpgm")
    return a.text(), kernel_desc(name, 168)
```

```python
from gen import *

class GemmCfg:
    pass


def gemm_mainloop(a, cfg):
    nseg = cfg.nseg
    A_BYTES = 128 * 128
    B_BYTES = nseg * 64 * 128
    STAGE = A_BYTES + B_BYTES
    NT = 16
    ndmaA = 4
    ndmaB = nseg * 8 // 4
    ndma = ndmaA + ndmaB
    sw = cfg.s_wave
    vAd = cfg.v_tmp
    vBd = cfg.v_tmp + 4
    l = cfg.v_lane
    t0, t1 = cfg.v_tmp + 5, cfg.v_tmp + 6
    for j in range(4):
        a(f"v_lshrrev_b32 v{t0}, 4, v{l}")
        a(f"v_add_u32 v{t0}, {4*j}, v{t0}")
        a(f"v_and_b32 v{t0}, 7, v{t0}")
        a(f"v_and_b32 v{t1}, 7, v{l}")
        a(f"v_xor_b32 v{t0}, v{t0}, v{t1}")
        a(f"v_lshlrev_b32 v{t0}, 4, v{t0}")
        a(f"v_lshrrev_b32 v{t1}, 3, v{l}")
        a(f"v_add_u32 v{t1}, {8*j}, v{t1}")
        a(f"v_lshlrev_b32 v{t1}, 11, v{t1}")
        a(f"v_add_u32 v{vAd+j}, v{t0}, v{t1}")
    a(f"v_lshrrev_b32 v{t0}, 4, v{l}")
    a(f"v_and_b32 v{t0}, 1, v{t0}")
    a(f"v_lshlrev_b32 v{t0}, 2, v{t0}")
    a(f"v_and_b32 v{t1}, 7, v{l}")
    a(f"v_xor_b32 v{t0}, v{t0}, v{t1}")
    a(f"v_lshlrev_b32 v{t0}, 4, v{t0}")
    a(f"v_lshrrev_b32 v{t1}, 3, v{l}")
    a(f"s_mov_b32 s{cfg.s_tmp}, {cfg.brow}")
    a(f"v_mul_lo_u32 v{t1}, v{t1}, s{cfg.s_tmp}")
    a(f"v_add_u32 v{vBd}, v{t0}, v{t1}")
    sA0, sB0, sT, sT2 = cfg.s_tmp + 1, cfg.s_tmp + 2, cfg.s_tmp + 3, cfg.s_tmp + 4
    a(f"s_lshl_b32 s{sA0}, s{cfg.s_mi}, 18")
    a(f"s_lshl_b32 s{sT}, s{sw}, 16")
    a(f"s_add_u32 s{sA0}, s{sA0}, s{sT}")
    sBoff = cfg.s_tmp + 5
    sBlds = sBoff + ndmaB
    for t in range(ndmaB):
        a(f"s_mul_i32 s{sT}, s{sw}, {ndmaB}")
        a(f"s_add_u32 s{sT}, s{sT}, {t}")
        a(f"s_lshr_b32 s{sT2}, s{sT}, 3")
        a(f"s_and_b32 s{sT}, s{sT}, 7")
        a(f"s_lshl_b32 s{sBlds+t}, s{sT2}, 13")
        a(f"s_lshl_b32 s{sBoff+t}, s{sT}, 10")
        a(f"s_add_u32 s{sBlds+t}, s{sBlds+t}, s{sBoff+t}")
        a(f"s_add_u32 s{sBlds+t}, s{sBlds+t}, {A_BYTES}")
        a(f"s_mul_i32 s{sBoff+t}, s{sT}, {8*cfg.brow}")
        a(f"s_mul_i32 s{sT2}, s{sT2}, {cfg.segstride}")
        a(f"s_add_u32 s{sBoff+t}, s{sBoff+t}, s{sT2}")
        a(f"s_add_u32 s{sBoff+t}, s{sBoff+t}, s{cfg.s_colbase}")
    sAlds = sBlds + ndmaB
    a(f"s_lshl_b32 s{sAlds}, s{sw}, 12")
    sM = sAlds + 1
    sG = sAlds + 2

    def issue_stage(st):
        buf = (st % 3) * STAGE
        for j in range(ndmaA):
            a(f"s_add_u32 s{sM}, s{sAlds}, {buf + j*1024}")
            a(f"s_mov_b32 m0, s{sM}")
            a(f"s_add_u32 s{sG}, s{sA0}, {st*128}")
            a(f"buffer_load_dwordx4 v{vAd+j}, s[{cfg.A_SRD}:{cfg.A_SRD+3}], s{sG} offen lds")
        for t in range(ndmaB):
            a(f"s_add_u32 s{sM}, s{sBlds+t}, {buf}")
            a(f"s_mov_b32 m0, s{sM}")
            a(f"s_add_u32 s{sG}, s{sBoff+t}, {st*64*cfg.brow}")
            a(f"buffer_load_dwordx4 v{vBd}, s[{cfg.B_SRD}:{cfg.B_SRD+3}], s{sG} offen lds")

    vAr = cfg.v_tmp + 8
    vBr = cfg.v_tmp + 8 + 12
    for j in range(4):
        a(f"v_lshrrev_b32 v{t0}, 5, v{l}")
        a(f"v_add_u32 v{t0}, {2*j}, v{t0}")
        a(f"v_lshrrev_b32 v{t1}, 1, v{l}")
        a(f"v_and_b32 v{t1}, 7, v{t1}")
        a(f"v_xor_b32 v{t0}, v{t0}, v{t1}")
        a(f"v_lshlrev_b32 v{t0}, 4, v{t0}")
        a(f"v_and_b32 v{t1}, 31, v{l}")
        a(f"v_lshlrev_b32 v{t1}, 7, v{t1}")
        a(f"v_add_u32 v{t0}, v{t0}, v{t1}")
        a(f"v_add_u32 v{vAr+j}, s{cfg.s_arow}, v{t0}")
        for stg in (1, 2):
            a(f"v_add_u32 v{vAr+4*stg+j}, {stg*STAGE}, v{vAr+j}")
    a(f"v_lshrrev_b32 v{t0}, 5, v{l}")
    a(f"v_lshlrev_b32 v{t0}, 3, v{t0}")
    a(f"v_lshrrev_b32 v{t1}, 2, v{l}")
    a(f"v_and_b32 v{t1}, 3, v{t1}")
    a(f"v_add_u32 v{t0}, v{t0}, v{t1}")
    a(f"v_lshlrev_b32 v{vBr}, 7, v{t0}")
    a(f"v_lshrrev_b32 v{t0}, 4, v{l}")
    a(f"v_and_b32 v{t0}, 1, v{t0}")
    a(f"v_lshlrev_b32 v{t0}, 1, v{t0}")
    a(f"v_lshrrev_b32 v{t1}, 1, v{l}")
    a(f"v_and_b32 v{t1}, 1, v{t1}")
    a(f"v_add_u32 v{t0}, v{t0}, v{t1}")
    a(f"v_add_u32 v{t0}, s{cfg.s_bchunk}, v{t0}")
    a(f"v_lshrrev_b32 v{t1}, 3, v{l}")
    a(f"v_and_b32 v{t1}, 1, v{t1}")
    a(f"v_lshlrev_b32 v{t1}, 2, v{t1}")
    a(f"v_xor_b32 v{t0}, v{t0}, v{t1}")
    a(f"v_lshlrev_b32 v{t0}, 4, v{t0}")
    a(f"v_add_u32 v{vBr}, v{vBr}, v{t0}")
    a(f"v_and_b32 v{t0}, 1, v{l}")
    a(f"v_lshlrev_b32 v{t0}, 3, v{t0}")
    a(f"v_add_u32 v{vBr}, v{vBr}, v{t0}")
    a(f"v_add_u32 v{vBr}, {A_BYTES}, v{vBr}")
    for stg in (1, 2):
        a(f"v_add_u32 v{vBr+stg}, {stg*STAGE}, v{vBr}")

    ncb = len(cfg.colblocks)
    FR = cfg.v_frag
    fsz = cfg.nrb * 4 + ncb * 4

    def fragA(s, rb):
        return FR + s * fsz + rb * 4

    def fragB(s, cb):
        return FR + s * fsz + cfg.nrb * 4 + cb * 4

    nreads = cfg.nrb + 2 * ncb

    def reads(st, j, s):
        stg = st % 3
        for rb in range(cfg.nrb):
            f = fragA(s, rb)
            a(f"ds_read_b128 v[{f}:{f+3}], v{vAr+4*stg+j} offset:{rb*4096}")
        for cb, (seg, boff) in enumerate(cfg.colblocks):
            f = fragB(s, cb)
            extra = 0 if boff is None else boff
            for half in range(2):
                off = seg * 8192 + (16 * j + 4 * half) * 128
                if extra:
                    a(f"ds_read_b64_tr_b16 v[{f+2*half}:{f+2*half+1}], v{cfg.v_brx+stg} offset:{off}")
                else:
                    a(f"ds_read_b64_tr_b16 v[{f+2*half}:{f+2*half+1}], v{vBr+stg} offset:{off}")

    def mfmas(s):
        for rb in range(cfg.nrb):
            for cb in range(ncb):
                acc = cfg.acc(rb, cb)
                A_, B_ = fragA(s, rb), fragB(s, cb)
                if cfg.swap[cb]:
                    a(f"v_mfma_f32_32x32x16_bf16 v[{acc}:{acc+15}], v[{B_}:{B_+3}], v[{A_}:{A_+3}], v[{acc}:{acc+15}]")
                else:
                    a(f"v_mfma_f32_32x32x16_bf16 v[{acc}:{acc+15}], v[{A_}:{A_+3}], v[{B_}:{B_+3}], v[{acc}:{acc+15}]")

    if any(b is not None and b for (_, b) in cfg.colblocks):
        for stg in range(3):
            a(f"v_xor_b32 v{cfg.v_brx+stg}, 64, v{vBr+stg}")

    issue_stage(0)
    issue_stage(1)
    a(f"s_waitcnt vmcnt({ndma})")
    a("s_barrier")
    for t in range(NT):
        if t + 2 < NT:
            issue_stage(t + 2)
        reads(t, 0, 0)
        for j in range(4):
            if j < 3:
                reads(t, j + 1, (j + 1) & 1)
                a(f"s_waitcnt lgkmcnt({nreads})")
            else:
                a("s_waitcnt lgkmcnt(0)")
            mfmas(j & 1)
        if t + 1 < NT:
            a(f"s_waitcnt vmcnt({ndma if t + 2 < NT else 0})")
            a("s_barrier")
```

```python
from gen import *
from gen_gemm import *

LOG2E = 0x3fb8aa3b
DEBUG = False


def phi_pair(a, x0, x1, t0, t1, t2, t3):
    bf16r2(a, x0, x1, t0)
    a(f"v_mul_f32 v{t0}, {LOG2E}, v{x0}")
    a(f"v_mul_f32 v{t1}, {LOG2E}, v{x1}")
    a(f"v_exp_f32 v{t0}, v{t0}")
    a(f"v_exp_f32 v{t1}, v{t1}")
    a(f"v_add_f32 v{t2}, 1.0, v{x0}")
    a(f"v_add_f32 v{t3}, 1.0, v{x1}")
    a(f"v_cmp_lt_f32 vcc, 0, v{x0}")
    a(f"s_nop 1")
    a(f"v_cndmask_b32 v{t0}, v{t0}, v{t2}, vcc")
    a(f"v_cmp_lt_f32 vcc, 0, v{x1}")
    a(f"s_nop 1")
    a(f"v_cndmask_b32 v{t1}, v{t1}, v{t3}, vcc")
    bf16r2(a, t0, t1, t2)
    a(f"v_add_f32 v{x0}, 0x358637bd, v{t0}")
    a(f"v_add_f32 v{x1}, 0x358637bd, v{t1}")
    bf16r2(a, x0, x1, t2)


def gen_k1(name):
    a = Asm()
    kernel_header(a, name)
    a("s_cmp_ge_u32 s2, 256")
    a("s_cbranch_scc1 L_end_" + name)
    a("s_load_dwordx2 s[4:5], s[0:1], 80")
    a("s_load_dwordx2 s[6:7], s[0:1], 8")
    a("v_lshrrev_b32 v1, 6, v0")
    a("v_and_b32 v2, 63, v0")
    a("s_nop 0")
    a("v_readfirstlane_b32 s3, v1")
    a("s_lshr_b32 s20, s2, 4")
    a("s_and_b32 s21, s2, 15")
    a("s_lshr_b32 s22, s3, 1")
    a("s_and_b32 s23, s3, 1")
    a("s_lshl_b32 s24, s22, 13")
    a("s_lshl_b32 s25, s23, 2")
    a("s_lshl_b32 s26, s21, 7")
    a("s_waitcnt lgkmcnt(0)")
    srd(a, 8, 4, 5, L['XN'], S * D * 2)
    srd(a, 12, 6, 7, 0, D * 3 * D * 2)
    srd(a, 16, 4, 5, 0, 28 * MB)
    cfg = GemmCfg()
    cfg.nseg = 3
    cfg.name = name
    cfg.brow = 6144
    cfg.segstride = 2048
    cfg.nrb = 2
    cfg.colblocks = [(0, None), (1, None), (2, None)]
    cfg.swap = [True, False, False]
    ACC = 32
    cfg.acc = lambda rb, cb: ACC + (rb * 3 + cb) * 16
    cfg.v_frag = 128
    cfg.v_tmp = 176
    cfg.v_brx = 214
    cfg.v_lane = 2
    cfg.s_wave = 3
    cfg.s_mi = 20
    cfg.s_arow = 24
    cfg.s_bchunk = 25
    cfg.s_colbase = 26
    cfg.s_tmp = 40
    cfg.A_SRD = 8
    cfg.B_SRD = 12
    for i in range(96):
        a(f"v_mov_b32 v{ACC+i}, 0")
    gemm_mainloop(a, cfg)
    a("s_nop 15")
    a("s_nop 7")
    T = 176
    for rb in range(2):
        for cb in (0, 1):
            acc = cfg.acc(rb, cb)
            for i in range(0, 16, 2):
                phi_pair(a, acc + i, acc + i + 1, T, T + 1, T + 2, T + 3)
    a(f"v_and_b32 v{T}, 31, v2")
    a(f"v_lshlrev_b32 v{T}, 11, v{T}")
    a(f"v_lshrrev_b32 v{T+1}, 5, v2")
    a(f"v_lshlrev_b32 v{T+1}, 4, v{T+1}")
    a(f"v_add_u32 v{T}, v{T}, v{T+1}")
    a("s_lshl_b32 s27, s20, 18")
    a("s_lshl_b32 s28, s22, 17")
    a("s_add_u32 s27, s27, s28")
    a("s_lshl_b32 s28, s21, 7")
    a("s_add_u32 s27, s27, s28")
    a("s_lshl_b32 s28, s23, 6")
    a("s_add_u32 s27, s27, s28")
    a(f"s_add_u32 s27, s27, {L['PQ']}")
    for rb in range(2):
        acc = cfg.acc(rb, 0)
        P = T + 4
        for q in range(4):
            a(f"v_cvt_pk_bf16_f32 v{P+2*q}, v{acc+4*q}, v{acc+4*q+1}")
            a(f"v_cvt_pk_bf16_f32 v{P+2*q+1}, v{acc+4*q+2}, v{acc+4*q+3}")
        a("s_nop 1")
        a(f"v_permlane32_swap_b32 v{P}, v{P+2}")
        a(f"v_permlane32_swap_b32 v{P+1}, v{P+3}")
        a(f"v_permlane32_swap_b32 v{P+4}, v{P+6}")
        a(f"v_permlane32_swap_b32 v{P+5}, v{P+7}")
        a(f"s_add_u32 s28, s27, {rb*32*2048}")
        a(f"buffer_store_dwordx4 v[{P}:{P+3}], v{T}, s[16:19], s28 offen")
        a(f"buffer_store_dwordx4 v[{P+4}:{P+7}], v{T}, s[16:19], s28 offen offset:32")
        a("s_nop 1")
    KV, Z = 128, 144
    for i in range(32):
        a(f"v_mov_b32 v{KV+i}, 0")
    a(f"v_mov_b32 v{T+12}, 0x3f803f80")
    a(f"v_mov_b32 v{T+13}, 0x3f803f80")
    a(f"v_mov_b32 v{T+14}, 0x3f803f80")
    a(f"v_mov_b32 v{T+15}, 0x3f803f80")
    ONES = T + 12
    for rb in range(2):
        ak, av = cfg.acc(rb, 1), cfg.acc(rb, 2)
        KP, VP = 160, 168
        for i in range(8):
            a(f"v_cvt_pk_bf16_f32 v{KP+i}, v{ak+2*i}, v{ak+2*i+1}")
            a(f"v_cvt_pk_bf16_f32 v{VP+i}, v{av+2*i}, v{av+2*i+1}")
        a("s_nop 1")
        if rb == 0 and DEBUG:
            a("s_cmp_lg_u32 s2, 0")
            a("s_cbranch_scc1 L_dbg_skip")
            a(f"v_lshlrev_b32 v{T}, 5, v2")
            a("s_lshl_b32 s28, s3, 12")
            a(f"s_add_u32 s28, s28, {L['GUP']}")
            a(f"buffer_store_dwordx4 v[{KP}:{KP+3}], v{T}, s[16:19], s28 offen")
            a(f"buffer_store_dwordx4 v[{KP+4}:{KP+7}], v{T}, s[16:19], s28 offen offset:16")
            a.label("L_dbg_skip")
        for h in range(2):
            a(f"v_mfma_f32_32x32x16_bf16 v[{KV}:{KV+15}], v[{VP+4*h}:{VP+4*h+3}], v[{KP+4*h}:{KP+4*h+3}], v[{KV}:{KV+15}]")
            a(f"v_mfma_f32_32x32x16_bf16 v[{Z}:{Z+15}], v[{ONES}:{ONES+3}], v[{KP+4*h}:{KP+4*h+3}], v[{Z}:{Z+15}]")
        a("s_nop 7")
        a("s_nop 7")
    a("s_barrier")
    a("s_nop 15")
    a(f"v_lshlrev_b32 v{T}, 2, v2")
    a("s_lshl_b32 s28, s23, 13")
    a(f"v_add_u32 v{T}, s28, v{T}")
    a("s_cmp_eq_u32 s22, 0")
    a("s_cbranch_scc1 L_k1_wm0_" + name)
    for i in range(16):
        a(f"ds_write_b32 v{T}, v{KV+i} offset:{i*256}")
    a(f"ds_write_b32 v{T}, v{Z} offset:{16*256}")
    a("s_waitcnt lgkmcnt(0)")
    a("s_barrier")
    a("s_endpgm")
    a.label("L_k1_wm0_" + name)
    a("s_barrier")
    for i in range(16):
        a(f"ds_read_b32 v{160+i}, v{T} offset:{i*256}")
    a(f"ds_read_b32 v{176+1}, v{T} offset:{16*256}")
    a("s_waitcnt lgkmcnt(0)")
    for i in range(16):
        a(f"v_add_f32 v{KV+i}, v{KV+i}, v{160+i}")
    a(f"v_add_f32 v{Z}, v{Z}, v{176+1}")
    a("s_lshl_b32 s27, s21, 1")
    a("s_add_u32 s27, s27, s23")
    a("s_lshl_b32 s27, s27, 4")
    a("s_add_u32 s27, s27, s20")
    a("s_mul_i32 s27, s27, 4224")
    a(f"s_add_u32 s27, s27, {L['KVP']}")
    a(f"v_and_b32 v{T}, 31, v2")
    a(f"v_lshlrev_b32 v{T}, 2, v{T}")
    a(f"v_lshrrev_b32 v{T+2}, 5, v2")
    a(f"v_lshlrev_b32 v{T+2}, 9, v{T+2}")
    a(f"v_add_u32 v{T+2}, v{T}, v{T+2}")
    for i in range(16):
        e0 = 8 * (i >> 2) + (i & 3)
        a(f"buffer_store_dword v{KV+i}, v{T+2}, s[16:19], s27 offen offset:{e0*128}")
    a("s_add_u32 s28, s27, 4096")
    a(f"buffer_store_dword v{Z}, v{T}, s[16:19], s28 offen")
    a("s_endpgm")
    a.label("L_end_" + name)
    a("s_endpgm")
    return a.text(), kernel_desc(name, 256, accum=256)
```

```python
from gen import *
from gen_gemm import *

LOG2E = 0x3fb8aa3b


def store_T_tile(a, acc, P, vaddr, srdreg, sbase, off):
    for q in range(4):
        a(f"v_cvt_pk_bf16_f32 v{P+2*q}, v{acc+4*q}, v{acc+4*q+1}")
        a(f"v_cvt_pk_bf16_f32 v{P+2*q+1}, v{acc+4*q+2}, v{acc+4*q+3}")
    a("s_nop 1")
    a(f"v_permlane32_swap_b32 v{P}, v{P+2}")
    a(f"v_permlane32_swap_b32 v{P+1}, v{P+3}")
    a(f"v_permlane32_swap_b32 v{P+4}, v{P+6}")
    a(f"v_permlane32_swap_b32 v{P+5}, v{P+7}")
    a(f"buffer_store_dwordx4 v[{P}:{P+3}], v{vaddr}, s[{srdreg}:{srdreg+3}], s{sbase} offen offset:{off}")
    a(f"buffer_store_dwordx4 v[{P+4}:{P+7}], v{vaddr}, s[{srdreg}:{srdreg+3}], s{sbase} offen offset:{off+32}")


def gen_kmid(name):
    a = Asm()
    kernel_header(a, name)
    a("s_cmp_ge_u32 s2, 256")
    a("s_cbranch_scc1 L_end_" + name)
    a("s_load_dwordx2 s[4:5], s[0:1], 80")
    a("s_load_dwordx2 s[6:7], s[0:1], 32")
    a("v_lshrrev_b32 v1, 6, v0")
    a("v_and_b32 v2, 63, v0")
    a("s_nop 0")
    a("v_readfirstlane_b32 s3, v1")
    a("s_and_b32 s20, s2, 15")
    a("s_lshr_b32 s21, s2, 4")
    a("s_waitcnt lgkmcnt(0)")
    srd(a, 16, 4, 5, 0, 28 * MB)
    srd(a, 8, 6, 7, 0, 2048)
    a("s_cmp_ge_u32 s2, 24")
    a("s_cbranch_scc1 L_nz_" + name)
    a("v_lshlrev_b32 v4, 2, v0")
    a("v_mov_b32 v5, 0")
    a("s_lshl_b32 s22, s2, 10")
    a(f"s_add_u32 s22, s22, {L['STATS']}")
    a("buffer_store_dword v5, v4, s[16:19], s22 offen")
    a.label("L_nz_" + name)
    a("s_cmp_lg_u32 s2, 255")
    a("s_cbranch_scc1 L_nw_" + name)
    a("s_cmp_lg_u32 s3, 0")
    a("s_cbranch_scc1 L_nw_" + name)
    a("v_lshlrev_b32 v4, 4, v2")
    a("buffer_load_dwordx4 v[8:11], v4, s[8:11], 0 offen")
    a("buffer_load_dwordx4 v[12:15], v4, s[8:11], 0 offen offset:1024")
    a("s_waitcnt vmcnt(0)")
    a("v_mov_b32 v5, 0")
    for j in range(8):
        unpack2(a, 8 + j, 6, 7)
        a("v_add_f32 v5, v5, v6")
        a("v_add_f32 v5, v5, v7")
    wave_allreduce_add(a, 5, 6, 60)
    a("v_mov_b32 v4, 0")
    a(f"s_mov_b32 s22, {L['WSUM']}")
    a("buffer_store_dword v5, v4, s[16:19], s22 offen")
    a.label("L_nw_" + name)
    a("v_lshlrev_b32 v4, 4, v0")
    a("v_and_b32 v5, 31, v0")
    a("v_lshlrev_b32 v5, 2, v5")
    for hh in range(2):
        a(f"s_lshl_b32 s22, s20, 1")
        a(f"s_add_u32 s22, s22, {hh}")
        a(f"s_mul_i32 s22, s22, {16*4224}")
        a(f"s_add_u32 s22, s22, {L['KVP']}")
        a(f"s_add_u32 s23, s22, 4096")
        for p in range(16):
            a(f"buffer_load_dwordx4 v[{32+4*p}:{35+4*p}], v4, s[16:19], s22 offen")
            a(f"buffer_load_dword v{96+p}, v5, s[16:19], s23 offen")
            if p < 15:
                a("s_add_u32 s22, s22, 4224")
                a("s_add_u32 s23, s23, 4224")
        a("s_waitcnt vmcnt(0)")
        for p in range(1, 16):
            for c in range(4):
                a(f"v_add_f32 v{32+c}, v{32+c}, v{32+4*p+c}")
            a(f"v_add_f32 v96, v96, v{96+p}")
        a(f"v_cvt_pk_bf16_f32 v8, v32, v33")
        a(f"v_cvt_pk_bf16_f32 v9, v34, v35")
        a(f"v_lshlrev_b32 v10, 3, v0")
        a(f"ds_write_b64 v10, v[8:9] offset:{hh*2048}")
        a(f"v_cvt_pk_bf16_f32 v8, v96, v96")
        a(f"v_and_b32 v10, 31, v0")
        a(f"v_lshlrev_b32 v10, 1, v10")
        a(f"ds_write_b16 v10, v8 offset:{4096+hh*64}")
    a("v_and_b32 v4, 31, v2")
    a("v_lshlrev_b32 v4, 11, v4")
    a("v_lshrrev_b32 v5, 5, v2")
    a("v_lshlrev_b32 v5, 4, v5")
    a("v_add_u32 v4, v4, v5")
    a("s_lshl_b32 s24, s21, 18")
    a("s_lshl_b32 s25, s3, 16")
    a("s_add_u32 s24, s24, s25")
    a("s_lshl_b32 s25, s20, 7")
    a("s_add_u32 s24, s24, s25")
    a(f"s_add_u32 s26, s24, {L['PQ']}")
    for hh in range(2):
        for kk in range(2):
            r = 32 + (hh * 2 + kk) * 4
            a(f"buffer_load_dwordx4 v[{r}:{r+3}], v4, s[16:19], s26 offen offset:{hh*64+kk*32}")
    a("s_waitcnt lgkmcnt(0)")
    a("s_barrier")
    a("v_and_b32 v6, 31, v2")
    a("v_lshlrev_b32 v6, 6, v6")
    a("v_add_u32 v6, v6, v5")
    for hh in range(2):
        for kk in range(2):
            r = 48 + (hh * 2 + kk) * 4
            a(f"ds_read_b128 v[{r}:{r+3}], v6 offset:{hh*2048+kk*32}")
            rz = 64 + (hh * 2 + kk) * 4
            a(f"ds_read_b128 v[{rz}:{rz+3}], v5 offset:{4096+hh*64+kk*32}")
    for i in range(64):
        a(f"v_mov_b32 v{80+i}, 0")
    a("s_waitcnt vmcnt(0) lgkmcnt(0)")
    a("s_nop 1")
    for hh in range(2):
        NUM, DEN = 80 + hh * 32, 96 + hh * 32
        for kk in range(2):
            pqf = 32 + (hh * 2 + kk) * 4
            kvf = 48 + (hh * 2 + kk) * 4
            zf = 64 + (hh * 2 + kk) * 4
            a(f"v_mfma_f32_32x32x16_bf16 v[{NUM}:{NUM+15}], v[{kvf}:{kvf+3}], v[{pqf}:{pqf+3}], v[{NUM}:{NUM+15}]")
            a(f"v_mfma_f32_32x32x16_bf16 v[{DEN}:{DEN+15}], v[{zf}:{zf+3}], v[{pqf}:{pqf+3}], v[{DEN}:{DEN+15}]")
    a("s_nop 15")
    a("s_nop 3")
    a(f"s_add_u32 s26, s24, {L['O']}")
    for hh in range(2):
        NUM, DEN = 80 + hh * 32, 96 + hh * 32
        bf16r(a, DEN, 8)
        a(f"v_add_f32 v{DEN}, 0x358637bd, v{DEN}")
        bf16r(a, DEN, 8)
        a(f"v_rcp_f32 v{DEN}, v{DEN}")
        a("s_nop 0")
        for i in range(0, 16, 2):
            bf16r2(a, NUM + i, NUM + i + 1, 8)
            a(f"v_mul_f32 v{NUM+i}, v{NUM+i}, v{DEN}")
            a(f"v_mul_f32 v{NUM+i+1}, v{NUM+i+1}, v{DEN}")
        store_T_tile(a, NUM, 16, 4, 16, 26, hh * 64)
    a("s_endpgm")
    a.label("L_end_" + name)
    a("s_endpgm")
    return a.text(), kernel_desc(name, 144)


def gen_k2(name, layer):
    a = Asm()
    kernel_header(a, name)
    a("s_cmp_ge_u32 s2, 256")
    a("s_cbranch_scc1 L_end_" + name)
    a("s_load_dwordx2 s[4:5], s[0:1], 80")
    a("s_load_dwordx2 s[6:7], s[0:1], 16")
    a("s_load_dwordx2 s[28:29], s[0:1], 0")
    a("s_load_dwordx2 s[30:31], s[0:1], 32")
    a("v_lshrrev_b32 v1, 6, v0")
    a("v_and_b32 v2, 63, v0")
    a("s_nop 0")
    a("v_readfirstlane_b32 s3, v1")
    a("s_lshr_b32 s20, s2, 4")
    a("s_and_b32 s21, s2, 15")
    a("s_lshl_b32 s24, s3, 12")
    a("s_mov_b32 s25, 0")
    a("s_lshl_b32 s26, s21, 7")
    a("s_waitcnt lgkmcnt(0)")
    srd(a, 8, 4, 5, L['O'], S * D * 2)
    srd(a, 12, 6, 7, 0, D * D * 2)
    srd(a, 16, 4, 5, 0, 28 * MB)
    cfg = GemmCfg()
    cfg.nseg = 1
    cfg.name = name
    cfg.brow = 2048
    cfg.segstride = 0
    cfg.nrb = 1
    cfg.colblocks = [(0, 0), (0, 64)]
    cfg.swap = [True, True]
    ACC = 32
    cfg.acc = lambda rb, cb: ACC + cb * 16
    cfg.v_frag = 64
    cfg.v_tmp = 96
    cfg.v_brx = 134
    cfg.v_lane = 2
    cfg.s_wave = 3
    cfg.s_mi = 20
    cfg.s_arow = 24
    cfg.s_bchunk = 25
    cfg.s_colbase = 26
    cfg.s_tmp = 40
    cfg.A_SRD = 8
    cfg.B_SRD = 12
    for i in range(32):
        a(f"v_mov_b32 v{ACC+i}, 0")
    gemm_mainloop(a, cfg)
    if layer == 1:
        srd(a, 8, 28, 29, 0, S * D * 2)
    else:
        srd(a, 8, 4, 5, L['X2'], S * D * 2)
    srd(a, 12, 30, 31, 0, 2048)
    T = 96
    a(f"v_and_b32 v{T}, 31, v2")
    a(f"v_lshlrev_b32 v{T}, 11, v{T}")
    a(f"v_lshrrev_b32 v{T+1}, 5, v2")
    a(f"v_lshlrev_b32 v{T+1}, 4, v{T+1}")
    a(f"v_add_u32 v{T}, v{T}, v{T+1}")
    a("s_lshl_b32 s27, s20, 18")
    a("s_lshl_b32 s28, s3, 16")
    a("s_add_u32 s27, s27, s28")
    a("s_add_u32 s27, s27, s26")
    a(f"s_add_u32 s28, s27, {L['X1']}")
    for cb in range(2):
        for pr in range(2):
            r = 112 + (cb * 2 + pr) * 4
            a(f"buffer_load_dwordx4 v[{r}:{r+3}], v{T}, s[8:11], s27 offen offset:{cb*64+pr*32}")
            rw = 128 + (cb * 2 + pr) * 4
            a(f"buffer_load_dwordx4 v[{rw}:{rw+3}], v{T+1}, s[12:15], s26 offen offset:{cb*64+pr*32}")
    a("s_nop 15")
    a("s_nop 3")
    for cb in range(2):
        acc = cfg.acc(0, cb)
        P = 144 + cb * 8
        for q in range(4):
            a(f"v_cvt_pk_bf16_f32 v{P+2*q}, v{acc+4*q}, v{acc+4*q+1}")
            a(f"v_cvt_pk_bf16_f32 v{P+2*q+1}, v{acc+4*q+2}, v{acc+4*q+3}")
        a("s_nop 1")
        a(f"v_permlane32_swap_b32 v{P}, v{P+2}")
        a(f"v_permlane32_swap_b32 v{P+1}, v{P+3}")
        a(f"v_permlane32_swap_b32 v{P+4}, v{P+6}")
        a(f"v_permlane32_swap_b32 v{P+5}, v{P+7}")
    a("v_mov_b32 v160, 0")
    a("v_mov_b32 v161, 0")
    a("v_mov_b32 v162, 0")
    a("s_waitcnt vmcnt(0)")
    for cb in range(2):
        for pr in range(2):
            P = 144 + cb * 8 + pr * 4
            r = 112 + (cb * 2 + pr) * 4
            rw = 128 + (cb * 2 + pr) * 4
            for d in range(4):
                unpack2(a, P + d, 164, 165)
                unpack2(a, r + d, 166, 167)
                a("v_add_f32 v164, v164, v166")
                a("v_add_f32 v165, v165, v167")
                bf16r2(a, 164, 165, 168)
                a(f"v_cvt_pk_bf16_f32 v{P+d}, v164, v165")
                unpack2(a, rw + d, 166, 167)
                a("v_add_f32 v160, v160, v164")
                a("v_add_f32 v160, v160, v165")
                a("v_fmac_f32 v161, v164, v164")
                a("v_fmac_f32 v161, v165, v165")
                a("v_fmac_f32 v162, v164, v166")
                a("v_fmac_f32 v162, v165, v167")
            a(f"buffer_store_dwordx4 v[{P}:{P+3}], v{T}, s[16:19], s28 offen offset:{cb*64+pr*32}")
    for k in range(3):
        a(f"v_mov_b32 v164, v{160+k}")
        a(f"v_mov_b32 v165, v{160+k}")
        a("s_nop 1")
        a("v_permlane32_swap_b32 v164, v165")
        a(f"v_add_f32 v{160+k}, v164, v165")
    a(f"v_and_b32 v{T}, 31, v2")
    a(f"v_lshlrev_b32 v{T}, 2, v{T}")
    a("s_lshl_b32 s27, s20, 9")
    a("s_lshl_b32 s28, s3, 7")
    a("s_add_u32 s27, s27, s28")
    a(f"s_add_u32 s27, s27, {L['STATS']}")
    a("s_mov_b64 exec, 0xffffffff")
    a(f"buffer_atomic_add_f32 v160, v{T}, s[16:19], s27 offen")
    a("s_add_u32 s27, s27, 8192")
    a(f"buffer_atomic_add_f32 v161, v{T}, s[16:19], s27 offen")
    a("s_add_u32 s27, s27, 8192")
    a(f"buffer_atomic_add_f32 v162, v{T}, s[16:19], s27 offen")
    a("s_endpgm")
    a.label("L_end_" + name)
    a("s_endpgm")
    return a.text(), kernel_desc(name, 176)
```

```python
import json, sys
sys.path.insert(0, "dev")
from gen import *
from gen_k1 import gen_k1
from gen_mid import gen_kmid, gen_k2
from gen_b import gen_k3, gen_k4
kernels = []
def add(name, grid, block, lds, td):
    kernels.append((name, grid, block, lds, td[0], td[1]))
add("ln0_kernel", 512, 256, 0, gen_rowk("ln0_kernel", "ln0"))
for ly, sfx in ((1, "a"), (2, "b")):
    add(f"k1{sfx}_kernel", 256, 256, 4*40960, gen_k1(f"k1{sfx}_kernel"))
    add(f"kmid{sfx}_kernel", 256, 256, 8192, gen_kmid(f"kmid{sfx}_kernel"))
    add(f"k2{sfx}_kernel", 256, 256, 4*24576, gen_k2(f"k2{sfx}_kernel", ly))
    add(f"k3{sfx}_kernel", 224, 256, 65536+8192+256, gen_k3(f"k3{sfx}_kernel"))
    add(f"k4{sfx}_kernel", 224, 256, 32768+8192, gen_k4(f"k4{sfx}_kernel"))
    add(f"k5{sfx}_kernel", 512, 256, 0, gen_rowk(f"k5{sfx}_kernel", "comb1" if ly == 1 else "comb2"))
hdr = open("interleave_layers__linear_attn_block__moe_arch_mod__prompt.s.ref").read().split("; Override launch")[0]
out = hdr
for (name, grid, block, lds, t, d) in kernels:
    out += f"; @launch kernel={name} grid=({grid},1,1) block=({block},1,1) lds={lds}\n"
out += '.amdgcn_target "amdgcn-amd-amdhsa--gfx950"\n'
for (name, grid, block, lds, t, d) in kernels:
    out += t
for (name, grid, block, lds, t, d) in kernels:
    out += d
open("interleave_layers__linear_attn_block__moe_arch_mod__prompt.s", "w").write(out)
json.dump(L, open("layout.json", "w"))
print("written", len(out))
```

```python
from gen import *
import os
EXP = os.environ.get('EXP','')

class GemmCfg:
    pass


def gemm_mainloop(a, cfg):
    nseg = cfg.nseg
    A_BYTES = 128 * 128
    B_BYTES = nseg * 64 * 128
    STAGE = A_BYTES + B_BYTES
    NT = 16
    NSTG = 4
    ndmaA = 4
    ndmaB = nseg * 8 // 4
    ndma = ndmaA + ndmaB
    sw = cfg.s_wave
    vAd = cfg.v_tmp
    vBd = cfg.v_tmp + 4
    l = cfg.v_lane
    t0, t1 = cfg.v_tmp + 5, cfg.v_tmp + 6
    for j in range(4):
        a(f"v_lshrrev_b32 v{t0}, 4, v{l}")
        a(f"v_add_u32 v{t0}, {4*j}, v{t0}")
        a(f"v_and_b32 v{t0}, 7, v{t0}")
        a(f"v_and_b32 v{t1}, 7, v{l}")
        a(f"v_xor_b32 v{t0}, v{t0}, v{t1}")
        a(f"v_lshlrev_b32 v{t0}, 4, v{t0}")
        a(f"v_lshrrev_b32 v{t1}, 3, v{l}")
        a(f"v_add_u32 v{t1}, {8*j}, v{t1}")
        a(f"v_lshlrev_b32 v{t1}, 11, v{t1}")
        a(f"v_add_u32 v{vAd+j}, v{t0}, v{t1}")
    a(f"v_lshrrev_b32 v{t0}, 4, v{l}")
    a(f"v_and_b32 v{t0}, 1, v{t0}")
    a(f"v_lshlrev_b32 v{t0}, 2, v{t0}")
    a(f"v_and_b32 v{t1}, 7, v{l}")
    a(f"v_xor_b32 v{t0}, v{t0}, v{t1}")
    a(f"v_lshlrev_b32 v{t0}, 4, v{t0}")
    a(f"v_lshrrev_b32 v{t1}, 3, v{l}")
    a(f"s_mov_b32 s{cfg.s_tmp}, {cfg.brow}")
    a(f"v_mul_lo_u32 v{t1}, v{t1}, s{cfg.s_tmp}")
    a(f"v_add_u32 v{vBd}, v{t0}, v{t1}")
    sA0, sB0, sT, sT2 = cfg.s_tmp + 1, cfg.s_tmp + 2, cfg.s_tmp + 3, cfg.s_tmp + 4
    a(f"s_lshl_b32 s{sA0}, s{cfg.s_mi}, 18")
    a(f"s_lshl_b32 s{sT}, s{sw}, 16")
    a(f"s_add_u32 s{sA0}, s{sA0}, s{sT}")
    sBoff = cfg.s_tmp + 5
    sBlds = sBoff + ndmaB
    for t in range(ndmaB):
        a(f"s_mul_i32 s{sT}, s{sw}, {ndmaB}")
        a(f"s_add_u32 s{sT}, s{sT}, {t}")
        a(f"s_lshr_b32 s{sT2}, s{sT}, 3")
        a(f"s_and_b32 s{sT}, s{sT}, 7")
        a(f"s_lshl_b32 s{sBlds+t}, s{sT2}, 13")
        a(f"s_lshl_b32 s{sBoff+t}, s{sT}, 10")
        a(f"s_add_u32 s{sBlds+t}, s{sBlds+t}, s{sBoff+t}")
        a(f"s_add_u32 s{sBlds+t}, s{sBlds+t}, {A_BYTES}")
        a(f"s_mul_i32 s{sBoff+t}, s{sT}, {8*cfg.brow}")
        a(f"s_mul_i32 s{sT2}, s{sT2}, {cfg.segstride}")
        a(f"s_add_u32 s{sBoff+t}, s{sBoff+t}, s{sT2}")
        a(f"s_add_u32 s{sBoff+t}, s{sBoff+t}, s{cfg.s_colbase}")
    sAlds = sBlds + ndmaB
    a(f"s_lshl_b32 s{sAlds}, s{sw}, 12")
    sM = sAlds + 1
    sG = sAlds + 2
    sKA = sAlds + 3
    sKB = sAlds + 4
    sIT = sAlds + 5

    def issue_stage(st):
        if 'nodma' in EXP and st >= 2:
            return
        buf = (st % NSTG) * STAGE
        for j in range(ndmaA):
            a(f"s_add_u32 s{sM}, s{sAlds}, {buf + j*1024}")
            a(f"s_mov_b32 m0, s{sM}")
            a(f"s_add_u32 s{sG}, s{sA0}, s{sKA}")
            a(f"buffer_load_dwordx4 v{vAd+j}, s[{cfg.A_SRD}:{cfg.A_SRD+3}], s{sG} offen lds")
        for t in range(ndmaB):
            a(f"s_add_u32 s{sM}, s{sBlds+t}, {buf}")
            a(f"s_mov_b32 m0, s{sM}")
            a(f"s_add_u32 s{sG}, s{sBoff+t}, s{sKB}")
            a(f"buffer_load_dwordx4 v{vBd}, s[{cfg.B_SRD}:{cfg.B_SRD+3}], s{sG} offen lds")
        a(f"s_add_u32 s{sKA}, s{sKA}, 128")
        a(f"s_add_u32 s{sKB}, s{sKB}, {64*cfg.brow}")

    vAr = cfg.v_tmp + 8
    vBr = cfg.v_tmp + 8 + 16
    for j in range(4):
        a(f"v_lshrrev_b32 v{t0}, 5, v{l}")
        a(f"v_add_u32 v{t0}, {2*j}, v{t0}")
        a(f"v_lshrrev_b32 v{t1}, 1, v{l}")
        a(f"v_and_b32 v{t1}, 7, v{t1}")
        a(f"v_xor_b32 v{t0}, v{t0}, v{t1}")
        a(f"v_lshlrev_b32 v{t0}, 4, v{t0}")
        a(f"v_and_b32 v{t1}, 31, v{l}")
        a(f"v_lshlrev_b32 v{t1}, 7, v{t1}")
        a(f"v_add_u32 v{t0}, v{t0}, v{t1}")
        a(f"v_add_u32 v{vAr+j}, s{cfg.s_arow}, v{t0}")
        for stg in range(1, NSTG):
            a(f"v_add_u32 v{vAr+4*stg+j}, {stg*STAGE}, v{vAr+j}")
    a(f"v_lshrrev_b32 v{t0}, 5, v{l}")
    a(f"v_lshlrev_b32 v{t0}, 3, v{t0}")
    a(f"v_lshrrev_b32 v{t1}, 2, v{l}")
    a(f"v_and_b32 v{t1}, 3, v{t1}")
    a(f"v_add_u32 v{t0}, v{t0}, v{t1}")
    a(f"v_lshlrev_b32 v{vBr}, 7, v{t0}")
    a(f"v_lshrrev_b32 v{t0}, 4, v{l}")
    a(f"v_and_b32 v{t0}, 1, v{t0}")
    a(f"v_lshlrev_b32 v{t0}, 1, v{t0}")
    a(f"v_lshrrev_b32 v{t1}, 1, v{l}")
    a(f"v_and_b32 v{t1}, 1, v{t1}")
    a(f"v_add_u32 v{t0}, v{t0}, v{t1}")
    a(f"v_add_u32 v{t0}, s{cfg.s_bchunk}, v{t0}")
    a(f"v_lshrrev_b32 v{t1}, 3, v{l}")
    a(f"v_and_b32 v{t1}, 1, v{t1}")
    a(f"v_lshlrev_b32 v{t1}, 2, v{t1}")
    a(f"v_xor_b32 v{t0}, v{t0}, v{t1}")
    a(f"v_lshlrev_b32 v{t0}, 4, v{t0}")
    a(f"v_add_u32 v{vBr}, v{vBr}, v{t0}")
    a(f"v_and_b32 v{t0}, 1, v{l}")
    a(f"v_lshlrev_b32 v{t0}, 3, v{t0}")
    a(f"v_add_u32 v{vBr}, v{vBr}, v{t0}")
    a(f"v_add_u32 v{vBr}, {A_BYTES}, v{vBr}")
    for stg in range(1, NSTG):
        a(f"v_add_u32 v{vBr+stg}, {stg*STAGE}, v{vBr}")

    ncb = len(cfg.colblocks)
    FR = cfg.v_frag
    fsz = cfg.nrb * 4 + ncb * 4

    def fragA(s, rb):
        return FR + s * fsz + rb * 4

    def fragB(s, cb):
        return FR + s * fsz + cfg.nrb * 4 + cb * 4

    nreads = cfg.nrb + 2 * ncb

    def reads(st, j, s):
        if 'noreads' in EXP:
            return
        stg = st % NSTG
        for rb in range(cfg.nrb):
            f = fragA(s, rb)
            a(f"ds_read_b128 v[{f}:{f+3}], v{vAr+4*stg+j} offset:{rb*4096}")
        for cb, (seg, boff) in enumerate(cfg.colblocks):
            f = fragB(s, cb)
            extra = 0 if boff is None else boff
            for half in range(2):
                off = seg * 8192 + (16 * j + 4 * half) * 128
                if extra:
                    a(f"ds_read_b64_tr_b16 v[{f+2*half}:{f+2*half+1}], v{cfg.v_brx+stg} offset:{off}")
                else:
                    a(f"ds_read_b64_tr_b16 v[{f+2*half}:{f+2*half+1}], v{vBr+stg} offset:{off}")

    def mfmas(s):
        if 'nomfma' in EXP:
            return
        for rb in range(cfg.nrb):
            for cb in range(ncb):
                acc = cfg.acc(rb, cb)
                A_, B_ = fragA(s, rb), fragB(s, cb)
                if cfg.swap[cb]:
                    a(f"v_mfma_f32_32x32x16_bf16 v[{acc}:{acc+15}], v[{B_}:{B_+3}], v[{A_}:{A_+3}], v[{acc}:{acc+15}]")
                else:
                    a(f"v_mfma_f32_32x32x16_bf16 v[{acc}:{acc+15}], v[{A_}:{A_+3}], v[{B_}:{B_+3}], v[{acc}:{acc+15}]")

    if any(b is not None and b for (_, b) in cfg.colblocks):
        for stg in range(NSTG):
            a(f"v_xor_b32 v{cfg.v_brx+stg}, 64, v{vBr+stg}")

    a(f"s_mov_b32 s{sKA}, 0")
    a(f"s_mov_b32 s{sKB}, 0")
    issue_stage(0)
    issue_stage(1)
    issue_stage(2)
    a(f"s_waitcnt vmcnt({2*ndma})")
    a("s_barrier")

    def body(st, issue, vm, barrier=True):
        if issue:
            issue_stage(st + 3)
        reads(st, 0, 0)
        for j in range(4):
            if j < 3:
                reads(st, j + 1, (j + 1) & 1)
                a(f"s_waitcnt lgkmcnt({nreads})")
            else:
                a("s_waitcnt lgkmcnt(0)")
            mfmas(j & 1)
        if barrier:
            a(f"s_waitcnt vmcnt({vm})")
            a("s_barrier")
    a(f"s_mov_b32 s{sIT}, 0")
    lab = f"L_gl_{cfg.name}"
    a.label(lab)
    for st in range(4):
        body(st, True, 2 * ndma)
    a(f"s_add_u32 s{sIT}, s{sIT}, 1")
    a(f"s_cmp_lt_u32 s{sIT}, 3")
    a(f"s_cbranch_scc1 {lab}")
    body(0, True, 2 * ndma)
    body(1, False, ndma)
    body(2, False, 0)
    body(3, False, 0, barrier=False)
```
